```python
import torch

def _softmax(x, axis=-1):
    return torch.softmax(x, dim=axis)
def _gelu(x):
    return torch.nn.functional.gelu(x, approximate="tanh")
def _silu(x):
    return torch.nn.functional.silu(x)
def _sigmoid(x):
    return torch.sigmoid(x)
def _layernorm(x, axis=-1, eps=1e-5):
    m = x.mean(dim=axis, keepdim=True)
    v = x.var(dim=axis, keepdim=True, unbiased=False)
    return (x - m) / torch.sqrt(v + eps)
def _scatter_add(tgt, idx, src, axis=0):
    return tgt.clone().index_add_(axis, idx, src)
def _segment_sum(src, seg, n):
    out = torch.zeros((n,) + src.shape[1:], dtype=src.dtype)
    return out.index_add_(0, seg, src)
def _pad(x, pw):
    flat = tuple(v for pair in reversed(pw) for v in pair)
    return torch.nn.functional.pad(x, flat)

kernel_name = 'interleave_layers__sliding_block_cached__mixer_token_mlp__decode'

def setup_inputs():

    _w = (lambda a: (lambda t: t.to(torch.bfloat16) if t.is_floating_point() else t)(torch.as_tensor(a)))
    def _A_setup():
        B, Sq, D = 4, 1, 512
        Hq, Hkv, Sk, Dh = 32, 8, 4096, 128
        assert Hq % Hkv == 0, (Hq, Hkv)
        return {
            "x": _w((lambda *s: torch.randn(*s, dtype=torch.bfloat16) * 0.05)(B, Sq, D)),
            "k_cache": _w((lambda *s: torch.randn(*s, dtype=torch.bfloat16) * 0.8)(B, Hkv, Sk, Dh)),
            "v_cache": _w((lambda *s: torch.randn(*s, dtype=torch.bfloat16) * 1.6)(B, Hkv, Sk, Dh)),
            "wq": _w((lambda *s: torch.randn(*s, dtype=torch.bfloat16) * 0.8)(D, Hq * Dh) * (D ** -0.5)),
            "wo": _w((lambda *s: torch.randn(*s, dtype=torch.bfloat16) * 1.6)(Hq * Dh, D) * ((Hq * Dh) ** -0.5)),
        }
    _A_in = _A_setup()

    def _B_setup():
        B, S, D, F = 4, 1, 512, 1792
        return {
            "x": _w((lambda *s: torch.randn(*s, dtype=torch.bfloat16) * 0.05)(B, S, D)),
            "w1": _w((lambda *s: torch.randn(*s, dtype=torch.bfloat16) * 1.6)(S, F) * (S ** -0.5)),
            "b1": _w((lambda *s: torch.randn(*s, dtype=torch.bfloat16) * 1.6)(F) * 0.02),
            "w2": _w((lambda *s: torch.randn(*s, dtype=torch.bfloat16) * 0.2)(F, S) * (F ** -0.5)),
            "b2": _w((lambda *s: torch.randn(*s, dtype=torch.bfloat16) * 0.2)(S) * 0.02),
        }
    _B_in = _B_setup()

    return {
        "A_x": _A_in["x"],
        "A_k_cache": _A_in["k_cache"],
        "A_v_cache": _A_in["v_cache"],
        "A_wq": _A_in["wq"],
        "A_wo": _A_in["wo"],
        "B_x": _B_in["x"],
        "B_w1": _B_in["w1"],
        "B_b1": _B_in["b1"],
        "B_w2": _B_in["w2"],
        "B_b2": _B_in["b2"],
    }

def reference(A_x, A_k_cache, A_v_cache, A_wq, A_wo, B_x, B_w1, B_b1, B_w2, B_b2):
    def _A_ref(x, k_cache, v_cache, wq, wo):
        B, Sq, D = x.shape
        Hq, Dh = 32, 128
        Hkv, Sk = k_cache.shape[1], k_cache.shape[2]
        W = min(4096, max(256, Sk // 4))
        rep = Hq // Hkv
        q = (lambda x, *d: x.permute(*d))((x @ wq).reshape(B, Sq, Hq, Dh), 0, 2, 1, 3)
        k = (lambda x, n, axis: torch.repeat_interleave(x, n, dim=axis))(k_cache[:, :, Sk - W:, :], rep, axis=1)
        v = (lambda x, n, axis: torch.repeat_interleave(x, n, dim=axis))(v_cache[:, :, Sk - W:, :], rep, axis=1)
        scores = torch.einsum("bhqd,bhkd->bhqk", q, k) * (Dh ** -0.5)
        p = _softmax(scores, axis=-1)
        o = torch.einsum("bhqk,bhkd->bhqd", p, v)
        return (lambda x, *d: x.permute(*d))(o, 0, 2, 1, 3).reshape(B, Sq, Hq * Dh) @ wo

    def _B_ref(x, w1, b1, w2, b2):
        B, S, D = x.shape
        h = _layernorm(x, axis=-1)
        u = torch.einsum("bsd,sf->bdf", h, w1) + b1
        u = _gelu(u)
        y = torch.einsum("bdf,fs->bds", u, w2) + b2
        return (lambda x, *d: x.permute(*d))(y, 0, 2, 1)

    x = A_x
    x = x + _A_ref(_layernorm(x, axis=-1), A_k_cache, A_v_cache, A_wq, A_wo)
    x = x + _B_ref(_layernorm(x, axis=-1), B_w1, B_b1, B_w2, B_b2)
    x = x + _A_ref(_layernorm(x, axis=-1), A_k_cache, A_v_cache, A_wq, A_wo)
    x = x + _B_ref(_layernorm(x, axis=-1), B_w1, B_b1, B_w2, B_b2)
    return x
```

```python
import re

TRANS = ("v_exp_f32", "v_log_f32", "v_rcp_f32", "v_rsq_f32", "v_sqrt_f32", "v_sin_f32", "v_cos_f32")

def regs_of(tok):
    tok = tok.strip()
    neg = tok.lstrip("-")
    m = re.fullmatch(r"abs\((.*)\)", neg)
    if m: neg = m.group(1)
    m = re.fullmatch(r"\|(.*)\|", neg)
    if m: neg = m.group(1)
    m = re.fullmatch(r"([vs])(\d+)", neg)
    if m: return [(m.group(1), int(m.group(2)))]
    m = re.fullmatch(r"([vs])\[(\d+):(\d+)\]", neg)
    if m: return [(m.group(1), i) for i in range(int(m.group(2)), int(m.group(3)) + 1)]
    if neg == "vcc": return [("s", 106), ("s", 107)]
    if neg == "vcc_lo": return [("s", 106)]
    if neg == "vcc_hi": return [("s", 107)]
    if neg == "exec": return [("s", 126), ("s", 127)]
    if neg == "m0": return [("s", 124)]
    return []

def split_ops(rest):
    ops, depth, cur = [], 0, ""
    for ch in rest:
        if ch in "[(": depth += 1
        if ch in "])": depth -= 1
        if ch == "," and depth == 0:
            ops.append(cur.strip()); cur = ""
        else: cur += ch
    if cur.strip(): ops.append(cur.strip())
    out = []
    mods = ""
    for i, o in enumerate(ops):
        parts = o.split()
        if len(parts) > 1:
            out.append(parts[0]); mods += " " + " ".join(parts[1:])
        else: out.append(o)
    return out, mods

class Inst:
    def __init__(self, text):
        self.text = text
        t = text.split(";")[0].strip()
        self.op, _, rest = t.partition(" ")
        self.ops, self.mods = split_ops(rest)
        op = self.op
        self.kind = "other"; self.dst = []; self.src = []
        R = [regs_of(o) for o in self.ops]
        flat = lambda l: [r for x in l for r in x]
        if op.startswith("v_mfma"):
            self.kind = "mfma"; self.dst = R[0]; self.srcA = R[1]; self.srcB = R[2]; self.srcC = R[3]; self.src = flat(R[1:])
        elif op.startswith("v_"):
            self.kind = "valu"
            if op.startswith("v_cmp"):
                self.dst = R[0]; self.src = flat(R[1:])
            elif op.startswith("v_permlane"):
                self.dst = flat(R[:2]); self.src = flat(R[:2])
            elif op.startswith("v_readlane") or op.startswith("v_readfirstlane"):
                self.dst = R[0]; self.src = flat(R[1:])
            else:
                self.dst = R[0]; self.src = flat(R[1:])
                if op.startswith(("v_fmac", "v_writelane", "v_dot2c", "v_pk_fmac")) or "_dpp" in op or "d16" in op: self.src += R[0]
                if op.startswith("v_cndmask") and len(self.ops) == 4: pass
                if op.startswith(("v_add_co", "v_sub_co", "v_addc_co")): self.dst = flat(R[:2]); self.src = flat(R[2:])
        elif op.startswith(("buffer_", "global_")):
            self.kind = "vmem"
            if "load" in op and " lds" not in (self.mods + " ") and not op.startswith("global_load_lds"):
                self.dst = R[0]; self.src = flat(R[1:])
            else:
                self.src = flat(R)
                if " lds" in self.mods + " " or op.startswith("global_load_lds"): self.src += [("s", 124)]; self.ldsdma = True
        elif op.startswith("ds_"):
            self.kind = "ds"
            if op.startswith(("ds_read", "ds_bpermute", "ds_swizzle")) or "_rtn" in op:
                self.dst = R[0]; self.src = flat(R[1:])
            else: self.src = flat(R)
        elif op.startswith("s_"):
            self.kind = "salu"
            if op.startswith(("s_cmp", "s_cbranch", "s_branch", "s_waitcnt", "s_barrier", "s_nop", "s_setprio", "s_sleep", "s_endpgm", "s_bitcmp")):
                self.src = flat(R)
            else:
                self.dst = R[0] if R else []; self.src = flat(R[1:])
        self.dpp = "_dpp" in op
        self.trans = op.startswith(TRANS)
        self.states = 1
        if op == "s_nop": self.states = int(self.ops[0], 0) + 1

def need(prod, cons):
    n = 0
    pd = set(prod.dst)
    pdv = {r for r in pd if r[0] == "v"}; pds = {r for r in pd if r[0] == "s"}
    cs = set(cons.src); cd = set(cons.dst)
    if prod.kind == "valu":
        if pdv & cs:
            if cons.kind == "mfma": n = max(n, 2)
            if cons.kind == "valu" and cons.dpp and cons.ops and pdv & set(regs_of(cons.ops[1])): n = max(n, 2)
            if cons.op.startswith("v_permlane"): n = max(n, 2)
            if cons.op.startswith(("v_readlane", "v_readfirstlane")): n = max(n, 1)
            if prod.trans and cons.kind in ("valu",) and not cons.trans: n = max(n, 1)
            if prod.trans and cons.kind in ("mfma", "vmem", "ds"): n = max(n, 2)
        if pds & cs:
            if cons.kind == "valu":
                n = max(n, 2)
                if cons.op.startswith(("v_readlane", "v_writelane")): n = max(n, 4)
            if cons.kind == "vmem": n = max(n, 5)
            if cons.kind == "salu" and not cons.op.startswith("s_cbranch"): n = max(n, 1)
    if prod.kind == "mfma":
        if cons.kind == "mfma":
            if pd & (set(cons.srcA) | set(cons.srcB)): n = max(n, 8)
            if pd & set(cons.srcC) and set(cons.srcC) != pd: n = max(n, 6)
            if pd & cd and set(cons.srcC) != pd: n = max(n, 8)
        elif cons.kind in ("valu", "vmem", "ds"):
            if pd & (cs | cd): n = max(n, 8)
        if cons.kind == "valu" and set(prod.srcC) & cd: n = max(n, 3)
    if prod.kind == "salu" and ("s", 124) in pd and getattr(cons, "ldsdma", False): n = max(n, 1)
    if prod.kind == "vmem" and "store" in prod.op and ("x4" in prod.op or "x3" in prod.op):
        data = set(regs_of(prod.ops[0])) if prod.op.startswith("buffer") else set(regs_of(prod.ops[1]))
        if data & cd and cons.kind in ("valu", "mfma"): n = max(n, 2)
        elif data & cd: n = max(n, 1)
    return n

class Asm:
    def __init__(self): self.lines = []
    def __call__(self, s):
        for l in s.split("\n"):
            l = l.strip()
            if l: self.lines.append(l)
    def label(self, n): self.lines.append(n + ":")
    def c(self, s): self.lines.append("; " + s)
    def finish(self):
        out = []; hist = []
        for l in self.lines:
            if l.startswith((";", ".")) or l.endswith(":"):
                out.append(l if l.endswith(":") or l.startswith(".") else "    " + l); continue
            ins = Inst(l)
            dist = 0; req = 0
            for p in reversed(hist):
                r = need(p, ins) - dist
                req = max(req, r)
                dist += p.states
                if dist >= 12: break
            if req > 0:
                nop = Inst(f"s_nop {req-1}"); hist.append(nop); out.append(f"    s_nop {req-1}")
            out.append("    " + l); hist.append(ins)
            if ins.op in ("s_branch", "s_endpgm", "s_setpc_b64"): hist = []
            hist = hist[-16:]
        return "\n".join(out) + "\n"
```

```python
import sys, struct
from asmlib import Asm
NAME = "interleave_layers__sliding_block_cached__mixer_token_mlp__decode_kernel"
O = dict(stamps=0, dumps="", kvnt=1, wnt=0, forcesc1=0, nexp=20, cnt="6,6,5,3", nofb=0)
for a in sys.argv[1:]:
    k, v = a.split("="); O[k] = v if k in ("dumps", "cnt") else int(v)
DUMPS = set(O["dumps"].split(",")) if O["dumps"] else set()
KVF = " nt" if O["kvnt"] else ""
WF = " nt" if O["wnt"] else ""
def f2u(x): return struct.unpack("<I", struct.pack("<f", x))[0]

W_A1 = 0x1000; W_A2 = 0x41000; W_B = 0x49000; W_BL = 0x48000; W_C = 0xD9000; W_CL = 0x8000; W_TAB = 0xE9000
W_STAMP = 0x8000000
L_K = 0; L_V = 32768; L_TPOS = 65536; L_WOB = 70656; L_WQO = 103424; L_O = 119808; L_CTL = 128512
L_TNEG = 131072; L_WQX = 136192; L_X1 = 152576; L_XS = 154624; L_X2 = 154880; L_RED = 156928
C_TAG, C_READY, C_S1, C_S2, C_S3, C_CLR = 0, 4, 8, 12, 16, 20
EMIN = 112; NEXP = 20; NENT = NEXP * 128
TOFF = L_TPOS - 2 * (EMIN << 7)
SCALE = (128 ** -0.5) * 1.4426950408889634
K0 = -2 * 0.7978845608028654 * 1.4426950408889634; K1 = K0 * 0.044715
EPS = 1e-5
sW, sG, sS, sB, sCL = "s3", "s4", "s5", "s6", "s7"
rX, rK, rV, rWQ, rWO, rWS, rDBG, rOUT, rW1, rB1, rW2 = ["s[%d:%d]" % (i, i + 3) for i in range(8, 52, 4)]
sB2p = "s[52:53]"; sB2 = "s54"; sTag = "s55"; sPure = "s56"; sLayer = "s57"; sSpin = "s58"; sKV = "s59"
M = ["s[60:61]", "s[62:63]", "s[64:65]", "s[66:67]"]
sT = ["s%d" % i for i in range(68, 80)]
sBg, sBp, sBs, sCg, sCg2, sCp, sA2g, sA2p, sKV2, sScale = ["s%d" % i for i in range(80, 90)]
sSt = "s[90:91]"
vLane, vL4, vA2, vBg, vBs, vOw, vOr, vXw, vXr, vXa, vXb, vCS, vWr, vStamp = ["v%d" % i for i in range(1, 15)]
vDbg = "v15"
KF, VF, WQF, WOF = 64, 96, 128, 192
def v(i): return "v%d" % i
def vr(i, n): return "v[%d:%d]" % (i, i + n - 1)

A = Asm()
stamp_idx = [0]
def stamp(i):
    if not O["stamps"]: return
    A(f"s_memrealtime {sSt}\ns_waitcnt lgkmcnt(0)\nv_writelane_b32 {vStamp}, s90, {i}")
dump_ids = {}
def dump(name, first, n):
    if name not in DUMPS: return
    did = dump_ids.setdefault(name, len(dump_ids))
    assert n <= 16 and did < 12
    A(f"s_waitcnt vmcnt(0) lgkmcnt(0)\ns_nop 7\ns_nop 7")
    A(f"s_lshl_b32 {sT[10]}, s2, 3\ns_add_u32 {sT[10]}, {sT[10]}, {sW}\ns_lshl_b32 {sT[10]}, {sT[10]}, 12\ns_add_u32 {sT[10]}, {sT[10]}, {(2 + did) << 23}")
    A(f"s_lshl_b32 {sT[11]}, {sLayer}, 22\ns_add_u32 {sT[10]}, {sT[10]}, {sT[11]}" if False else "")
    A(f"v_lshlrev_b32 {vDbg}, 6, {vLane}")
    for i in range(n):
        A(f"buffer_store_dword {v(first+i)}, {vDbg}, {rWS}, {sT[10]} offen offset:{4*i}")
    A("s_waitcnt vmcnt(0)")
uid = [0]
def lab(p):
    uid[0] += 1; return f"L_{p}{uid[0]}"

def spin_lds(addr_v, tmp, cond_target, dst_s, off=0, ge=True):
    l = lab("sp"); d = lab("spd")
    A.label(l)
    A(f"ds_read_b32 {tmp}, {addr_v} offset:{off}\ns_waitcnt lgkmcnt(0)\nv_readfirstlane_b32 {dst_s}, {tmp}")
    A(f"s_cmp_ge_u32 {dst_s}, {cond_target}\ns_cbranch_scc1 {d}")
    A(f"s_sub_u32 {sSpin}, {sSpin}, 1\ns_cbranch_scc0 {l}\ns_mov_b32 {sSpin}, 0")
    A.label(d)

def retry(lbl_retry, lbl_ok):
    A(f"s_cbranch_vccz {lbl_ok}")
    A(f"s_sub_u32 {sSpin}, {sSpin}, 1\ns_cbranch_scc0 {lbl_retry}\ns_mov_b32 {sSpin}, 0")

def wdma(voff_even, voff_odd, srd, s_row_off, rowstride8, m0expr_s, flags):
    A(f"s_mov_b32 m0, {m0expr_s}")
    for i in range(4):
        A(f"buffer_load_dwordx4 {voff_odd if i & 1 else voff_even}, {srd}, {s_row_off} offen offset:{i*1024}{flags} lds")
        if i < 3: A(f"s_add_u32 {s_row_off}, {s_row_off}, {rowstride8 - 1024}")

def allsum2(a, b, ta, tb, rors=(8, 4, 2, 1)):
    for r in rors:
        A(f"v_add_f32_dpp {a}, {a}, {a} row_ror:{r} row_mask:0xf bank_mask:0xf")
        A(f"v_add_f32_dpp {b}, {b}, {b} row_ror:{r} row_mask:0xf bank_mask:0xf")
    for sw in ("v_permlane16_swap_b32", "v_permlane32_swap_b32"):
        A(f"v_mov_b32 {ta}, {a}\nv_mov_b32 {tb}, {b}\n{sw} {a}, {ta}\n{sw} {b}, {tb}\nv_add_f32 {a}, {a}, {ta}\nv_add_f32 {b}, {b}, {tb}")

def sum63(a, b=None):
    rs = [a] + ([b] if b else [])
    for r in (1, 2, 4, 8):
        for x in rs: A(f"v_add_f32_dpp {x}, {x}, {x} row_shr:{r} row_mask:0xf bank_mask:0xf")
    for x in rs: A(f"v_add_f32_dpp {x}, {x}, {x} row_bcast:15 row_mask:0xa bank_mask:0xf")
    for x in rs: A(f"v_add_f32_dpp {x}, {x}, {x} row_bcast:31 row_mask:0xc bank_mask:0xf")

MF = "v_mfma_f32_16x16x32_bf16"

A(f"; @launch grid=(256,1,1) block=(512,1,1) lds=163840")
A('.amdgcn_target "amdgcn-amd-amdhsa--gfx950"')
A(f".text\n.globl {NAME}\n.p2align 8\n.type {NAME},@function")
A.label(NAME)
if O["stamps"]: A(f"s_memrealtime s[92:93]")
for (r, off) in ((20, 24), (8, 0), (12, 8), (16, 16), (28, 96), (24, 32), (32, 88), (36, 80), (40, 48), (44, 56), (48, 64), (52, 72)):
    A(f"s_load_dwordx2 s[{r}:{r+1}], s[0:1], {off}")
A("s_cmp_ge_u32 s2, 256\ns_cbranch_scc1 L_END")
A(f"v_lshrrev_b32 v16, 6, v0\nv_and_b32 {vLane}, 63, v0\nv_readfirstlane_b32 {sW}, v16")
A(f"s_and_b32 {sG}, s2, 7\ns_bfe_u32 {sS}, s2, 0x30003\ns_lshr_b32 {sB}, s2, 6\ns_lshl_b32 {sCL}, {sB}, 3\ns_add_u32 {sCL}, {sCL}, {sG}")
for (r, n) in ((8, 4096), (12, 32 << 20), (16, 32 << 20), (20, 4 << 20), (24, 4 << 20), (28, 256 << 20), (32, 256), (36, 4096), (40, 3584), (44, 3584), (48, 3584)):
    A(f"s_mov_b32 s{r+2}, {n}\ns_mov_b32 s{r+3}, 0x20000")
A(f"v_lshlrev_b32 {vL4}, 2, {vLane}\nv_mov_b32 v17, 0\nv_add_u32 v16, {L_CTL}, {vL4}\nds_write_b32 v16, v17")
A(f"s_mov_b32 {sSpin}, 0x200000\ns_mov_b32 {sLayer}, 0")
for i in range(4):
    m = (0x000F000F << (4 * i)) & 0xFFFFFFFF
    A(f"s_mov_b32 s{60+2*i}, {m}\ns_mov_b32 s{61+2*i}, {m}")
A(f"v_and_b32 v18, 15, {vLane}\nv_lshrrev_b32 v19, 4, {vLane}")
A(f"""v_lshrrev_b32 v20, 2, v18
v_lshl_add_u32 v20, v19, 3, v20
v_lshlrev_b32 v20, 7, v20
v_lshrrev_b32 v21, 3, v18
v_and_b32 v22, 1, v19
v_lshl_or_b32 v21, v22, 1, v21
v_bfe_u32 v22, v18, 1, 1
v_lshl_or_b32 v21, v21, 1, v22
v_lshl_add_u32 v20, v21, 4, v20
v_and_b32 v21, 1, v18
v_lshl_add_u32 {vWr}, v21, 3, v20""")
A(f"""v_and_b32 v23, 7, {vLane}
v_and_b32 v22, 1, v19
v_lshlrev_b32 v22, 1, v22
v_xor_b32 v23, v23, v22
v_lshlrev_b32 v23, 4, v23
v_lshrrev_b32 v24, 3, {vLane}""")
if O["stamps"]: A(f"v_mov_b32 {vStamp}, 0")
A(f"s_cmp_eq_u32 {sW}, 7\ns_cbranch_scc1 L_Q1PRE")
A(f"s_cmp_ge_u32 {sW}, 4\ns_cbranch_scc1 L_HELP")

A.c("---- main prologue")
A(f"""s_lshl_b32 {sKV}, {sCL}, 20
s_lshl_b32 {sT[0]}, {sS}, 15
s_add_u32 {sKV}, {sKV}, {sT[0]}
s_lshl_b32 {sT[0]}, {sW}, 13
s_add_u32 {sKV}, {sKV}, {sT[0]}
s_add_u32 {sKV}, {sKV}, 0xC0000
s_add_u32 {sKV2}, {sKV}, 4096""")
A(f"""v_xor_b32 v25, v18, v19
v_lshlrev_b32 v26, 8, v19
v_lshl_add_u32 v26, v25, 4, v26
v_xor_b32 v27, 64, v26
v_xor_b32 v28, 0x80, v26
v_xor_b32 v29, 0xc0, v26
v_lshlrev_b32 v30, 1, v19
v_xor_b32 v30, v18, v30
v_lshlrev_b32 v30, 4, v30
v_lshl_add_u32 v30, v19, 8, v30
v_xor_b32 v31, 0x80, v30""")
A(f"s_lshl_b32 {sT[1]}, {sW}, 13")
A(f"s_lshl_b32 {sT[2]}, {sB}, 10\ns_lshl_b32 {sT[3]}, {sW}, 8\ns_add_u32 {sT[2]}, {sT[2]}, {sT[3]}")
A("s_waitcnt lgkmcnt(0)")
if O["stamps"]: A(f"v_writelane_b32 {vStamp}, s92, 0")
stamp(1)
A("s_barrier\ns_setprio 2")
A(f"buffer_load_dword {vXa}, {vL4}, {rX}, {sT[2]} offen")
A(f"s_mov_b32 m0, {sT[1]}")
for i in range(8):
    if i == 4: A(f"s_add_u32 {sT[1]}, {sT[1]}, 4096\ns_mov_b32 m0, {sT[1]}")
    A(f"buffer_load_dwordx4 {v(26 + (i >> 1))}, {rK}, {sKV if i < 4 else sKV2} offen offset:{(i & 3) * 1024}{KVF} lds")
A(f"s_add_u32 {sT[1]}, {sT[1]}, {L_V - 4096}\ns_mov_b32 m0, {sT[1]}")
for i in range(8):
    if i == 4: A(f"s_add_u32 {sT[1]}, {sT[1]}, 4096\ns_mov_b32 m0, {sT[1]}")
    A(f"buffer_load_dwordx4 {v(30 + ((i >> 1) & 1))}, {rV}, {sKV if i < 4 else sKV2} offen offset:{(i & 3) * 1024}{KVF} lds")
stamp(2)
A.c("---- persistent addresses")
A(f"""v_and_b32 v20, 3, v18
v_lshrrev_b32 v21, 2, v18
v_lshlrev_b32 {vA2}, 4, v19
v_lshl_add_u32 {vA2}, v20, 8, {vA2}
v_lshlrev_b32 v32, 5, v19
v_lshl_add_u32 v32, v21, 8, v32
v_lshl_add_u32 v32, v20, 11, v32""")
A(f"""v_and_b32 v22, 7, v18
v_mul_u32_u24 v22, 1152, v22
v_lshl_add_u32 {vBg}, v19, 4, v22
v_lshl_add_u32 v22, v19, 2, v18
v_and_b32 v22, 7, v22
v_mul_u32_u24 {vBs}, 1152, v22""")
A(f"""s_mul_i32 {sT[0]}, {sW}, 2112
s_add_u32 {sT[0]}, {sT[0]}, {L_O}
v_mul_u32_u24 v22, 528, v20
v_lshl_add_u32 v22, v21, 6, v22
v_lshl_add_u32 v22, v19, 4, v22
v_add_u32 {vOw}, {sT[0]}, v22
s_mul_i32 {sT[0]}, {sW}, 528
s_add_u32 {sT[0]}, {sT[0]}, {L_O}
v_lshl_add_u32 {vOr}, {vLane}, 3, {sT[0]}""")
A(f"""v_bfe_u32 v22, {vLane}, 1, 1
v_lshlrev_b32 v22, 10, v22
v_lshl_add_u32 v22, v21, 8, v22
v_lshl_add_u32 v22, v19, 4, v22
v_and_b32 v25, 1, {vLane}
v_lshl_add_u32 v22, v25, 3, v22
s_lshl_b32 {sT[0]}, {sW}, 6
s_add_u32 {sT[0]}, {sT[0]}, {L_X1}
v_add_u32 {vXw}, {sT[0]}, v22
s_lshl_b32 {sT[0]}, {sB}, 2
v_add_u32 v22, {sT[0]}, v18
v_and_b32 v22, 15, v22
v_lshl_add_u32 v22, v19, 4, v22
v_lshlrev_b32 v22, 4, v22
v_add_u32 {vXr}, {L_X1}, v22""")
A(f"""s_mul_i32 {sBg}, {sCL}, 9216
s_add_u32 {sBg}, {sBg}, {W_B}
s_mul_i32 {sT[0]}, {sS}, 1152
s_add_u32 {sBp}, {sBg}, {sT[0]}
s_lshl_b32 {sT[0]}, {sW}, 3
s_add_u32 {sBs}, {sBg}, {sT[0]}
s_add_u32 {sBs}, {sBs}, 1024
s_lshl_b32 {sT[0]}, {sW}, 8
s_add_u32 {sBg}, {sBg}, {sT[0]}
s_add_u32 {sBp}, {sBp}, {sT[0]}
s_lshl_b32 {sCg}, {sB}, 13
s_add_u32 {sCg}, {sCg}, {W_C}
s_lshl_b32 {sT[1]}, {sG}, 10
s_add_u32 {sCp}, {sCg}, {sT[1]}
s_lshl_b32 {sT[1]}, {sS}, 7
s_add_u32 {sCp}, {sCp}, {sT[1]}
s_add_u32 {sCg}, {sCg}, {sT[0]}
s_add_u32 {sCg2}, {sCg}, 4096
s_lshl_b32 {sA2g}, {sCL}, 10
s_add_u32 {sA2g}, {sA2g}, {W_A2}
s_add_u32 {sA2p}, {sA2g}, {sT[1]}
s_lshl_b32 {sT[0]}, {sW}, 5
s_add_u32 {sA2p}, {sA2p}, {sT[0]}
s_mov_b32 {sScale}, {f2u(SCALE)}""")
A(f"""v_xor_b32 v25, v18, v19
v_lshlrev_b32 v33, 11, v21
v_lshl_add_u32 v33, v20, 8, v33
v_lshl_add_u32 v33, v25, 4, v33
s_lshl_b32 {sT[0]}, {sW}, 13
v_add_u32 v33, {sT[0]}, v33
v_xor_b32 v34, 64, v33
v_xor_b32 v35, 0x80, v33
v_xor_b32 v36, 0xc0, v33
v_lshl_add_u32 v37, v19, 3, v21
v_lshlrev_b32 v37, 8, v37
v_and_b32 v22, 1, v19
v_lshl_add_u32 v22, v22, 2, v21
v_bfe_u32 v25, v18, 1, 1
v_lshl_or_b32 v22, v22, 1, v25
v_lshl_add_u32 v37, v22, 4, v37
v_and_b32 v22, 1, v18
v_lshl_add_u32 v37, v22, 3, v37
s_add_u32 {sT[0]}, {sT[0]}, {L_V}
v_add_u32 v37, {sT[0]}, v37""")
A(f"""s_lshl_b32 {sT[0]}, {sG}, 19
s_lshl_b32 {sT[1]}, {sW}, 17
s_add_u32 {sT[0]}, {sT[0]}, {sT[1]}
s_lshl_b32 {sT[1]}, {sS}, 7
s_add_u32 {sT[0]}, {sT[0]}, {sT[1]}
v_lshl_add_u32 v38, v24, 10, v23
v_add_u32 v38, {sT[0]}, v38
v_xor_b32 v39, 64, v38
v_mov_b32 v40, {L_CTL}""")
def wo_quarter(qi):
    A(f"""s_add_u32 {sT[0]}, {sB}, {qi}
s_and_b32 {sT[0]}, {sT[0]}, 3
s_lshl_b32 {sT[1]}, {sT[0]}, 15
s_and_b32 {sT[2]}, {sT[0]}, 1
s_lshl_b32 {sT[2]}, {sT[2]}, 12
s_lshr_b32 {sT[0]}, {sT[0]}, 1
s_mul_i32 {sT[0]}, {sT[0]}, {L_WOB}
s_add_u32 {sT[2]}, {sT[2]}, {sT[0]}
s_lshl_b32 {sT[0]}, {sW}, 13
s_add_u32 {sT[2]}, {sT[2]}, {sT[0]}""")
    wdma("v38", "v39", rWO, sT[1], 8192, sT[2], WF)
A("s_waitcnt vmcnt(8)")
stamp(3)
for t in range(2):
    for ks in range(4):
        A(f"ds_read_b128 {vr(KF + (t * 4 + ks) * 4, 4)}, {v(33 + ks)} offset:{t * 1024}")
A(f"v_and_b32 {vXb}, 0xffff0000, {vXa}\nv_lshlrev_b32 {vXa}, 16, {vXa}")
spin_lds("v40", "v41", 1, sTag, off=C_TAG)
A(f"s_lshl_b32 {sT[4]}, {sCL}, 13\ns_add_u32 {sT[4]}, {sT[4]}, {W_A1}")
RA = [16, 24, 42, 50]
def a1_issue():
    for ks in range(4):
        for hf in range(2):
            A(f"buffer_load_dwordx4 {vr(RA[ks] + 4 * hf, 4)}, v32, {rWS}, {sT[4]} offen offset:{(ks >> 1) * 1024 + (ks & 1) * 128 + 16 * hf} sc1")
a1_issue()
wo_quarter(0)
A("s_waitcnt vmcnt(4)")
stamp(4)
for i in range(8):
    if i: A(f"v_xor_b32 v58, {32 * i}, v37")
    for hf in range(2):
        A(f"ds_read_b64_tr_b16 {vr(VF + 4 * i + 2 * hf, 2)}, {'v37' if i == 0 else 'v58'} offset:{hf * 1024}")
A.label("L_A1CHK")
tags = [RA[ks] + 1 + 2 * j for ks in range(4) for j in range(4)]
A(f"v_max3_u32 v59, {v(tags[0])}, {v(tags[1])}, {v(tags[2])}\nv_min3_u32 v60, {v(tags[0])}, {v(tags[1])}, {v(tags[2])}")
for j in range(3, 15, 2):
    A(f"v_max3_u32 v59, v59, {v(tags[j])}, {v(tags[j+1])}\nv_min3_u32 v60, v60, {v(tags[j])}, {v(tags[j+1])}")
A(f"v_max_u32 v59, v59, {v(tags[15])}\nv_min_u32 v60, v60, {v(tags[15])}")
A(f"v_xor_b32 v59, {sTag}, v59\nv_xor_b32 v60, {sTag}, v60\nv_or_b32 v59, v59, v60\nv_cmp_ne_u32 vcc, 0, v59")
A(f"s_cbranch_vccz L_A1OK\ns_sub_u32 {sSpin}, {sSpin}, 1\ns_cbranch_scc1 L_A1TO")
a1_issue()
A("s_waitcnt vmcnt(0)\ns_branch L_A1CHK")
A.label("L_A1TO")
A(f"s_mov_b32 {sSpin}, 0")
A.label("L_A1OK")
stamp(5)
for ks in range(4):
    r = RA[ks]
    A(f"v_mov_b32 {v(r+1)}, {v(r+2)}\nv_mov_b32 {v(r+2)}, {v(r+4)}\nv_mov_b32 {v(r+3)}, {v(r+6)}")
SR = 32
S0, S1 = 20, 28
A("s_waitcnt lgkmcnt(0)")
dump("kf", KF, 16); dump("vf", VF, 16); dump("q1", RA[0], 4)
for ks in range(4):
    A(f"{MF} {vr(S0,4)}, {vr(KF + ks * 4, 4)}, {vr(RA[ks], 4)}, {'0' if ks == 0 else vr(S0,4)}")
    A(f"{MF} {vr(S1,4)}, {vr(KF + (4 + ks) * 4, 4)}, {vr(RA[ks], 4)}, {'0' if ks == 0 else vr(S1,4)}")
SS = [S0, S0 + 1, S0 + 2, S0 + 3, S1, S1 + 1, S1 + 2, S1 + 3]
for r in (4, 8):
    for x in SS: A(f"v_add_f32_dpp {v(x)}, {v(x)}, {v(x)} row_ror:{r} row_mask:0xf bank_mask:0xf")

A.label("L_ATT")
dump("s", S0, 12)
A(f"v_max3_f32 v16, {v(SS[0])}, {v(SS[1])}, {v(SS[2])}\nv_max3_f32 v17, {v(SS[3])}, {v(SS[4])}, {v(SS[5])}\nv_max3_f32 v16, v16, {v(SS[6])}, {v(SS[7])}\nv_max_f32 v16, v16, v17")
A("v_mov_b32 v17, v16\nv_permlane32_swap_b32 v16, v17\nv_max_f32 v16, v16, v17\nv_mov_b32 v17, v16\nv_permlane16_swap_b32 v16, v17\nv_max_f32 v16, v16, v17")
A(f"v_mul_f32 v16, {sScale}, v16")
for x in SS: A(f"v_fma_f32 {v(x)}, {v(x)}, {sScale}, -v16")
for x in SS: A(f"v_exp_f32 {v(x)}, {v(x)}")
P = 24
for j in range(4): A(f"v_cvt_pk_bf16_f32 {v(P + j)}, {v(SS[2*j])}, {v(SS[2*j+1])}")
PV_ = [42, 46]
OA = [50, 54]
for rho in range(4):
    pb = PV_[rho & 1]
    for j in range(4): A(f"v_cndmask_b32 {v(pb + j)}, 0, {v(P + j)}, {M[rho]}")
    for a in range(2):
        A(f"{MF} {vr(OA[a],4)}, {vr(VF + 4 * (4 * a + rho), 4)}, {vr(pb,4)}, {'0' if rho == 0 else vr(OA[a],4)}")
A(f"v_add_f32 v17, {v(SS[0])}, {v(SS[1])}\nv_add_f32 v18, {v(SS[2])}, {v(SS[3])}\nv_add_f32 v19, {v(SS[4])}, {v(SS[5])}\nv_add_f32 v20, {v(SS[6])}, {v(SS[7])}")
A("v_add_f32 v17, v17, v18\nv_add_f32 v19, v19, v20\nv_add_f32 v17, v17, v19")
A("v_mov_b32 v18, v17\nv_permlane32_swap_b32 v17, v18\nv_add_f32 v17, v17, v18\nv_mov_b32 v18, v17\nv_permlane16_swap_b32 v17, v18\nv_add_f32 v17, v17, v18")
A(f"s_mov_b64 exec, 0xf\nds_write_b64 {vOw}, v[16:17] offset:512\ns_mov_b64 exec, -1")
A(f"ds_write_b128 {vOw}, {vr(OA[0],4)}\nds_write_b128 {vOw}, {vr(OA[1],4)} offset:256")
A(f"s_mul_i32 {sT[0]}, {sW}, 528\ns_add_u32 {sT[0]}, {sT[0]}, {L_O + 512}\nv_mov_b32 v18, {sT[0]}")
A(f"s_cmp_eq_u32 {sLayer}, 0\ns_cbranch_scc1 L_SY1")
A("s_waitcnt lgkmcnt(0)\ns_barrier")
A.label("L_SY1R")
stamp(6)
for w in range(4): A(f"ds_read_b64 {vr(20 + 2 * w, 2)}, v18 offset:{w * 2112}")
for w in range(4): A(f"ds_read_b64 {vr(28 + 2 * w, 2)}, {vOr} offset:{w * 2112}")
A("s_waitcnt lgkmcnt(4)")
A("v_max3_f32 v16, v20, v22, v24\nv_max_f32 v16, v16, v26")
for w in range(4): A(f"v_sub_f32 {v(20+2*w)}, {v(20+2*w)}, v16")
for w in range(4): A(f"v_exp_f32 {v(20+2*w)}, {v(20+2*w)}")
A("s_waitcnt lgkmcnt(0)")
A("v_mul_f32 v42, v20, v28\nv_mul_f32 v43, v20, v29\nv_mul_f32 v17, v20, v21")
for w in range(1, 4):
    A(f"v_fmac_f32 v42, {v(20+2*w)}, {v(28+2*w)}\nv_fmac_f32 v43, {v(20+2*w)}, {v(29+2*w)}\nv_fmac_f32 v17, {v(20+2*w)}, {v(21+2*w)}")
A("v_cvt_pk_bf16_f32 v42, v42, v43")
A(f"s_mul_i32 {sT[0]}, {sW}, 248\ns_sub_u32 {sT[0]}, {sBp}, {sT[0]}")
A(f"s_cmp_eq_u32 {sPure}, 2\ns_cbranch_scc0 L_BPUB_SC1")
A(f"buffer_store_dword v42, {vL4}, {rWS}, {sBp} offen\ns_mov_b64 exec, 1\nbuffer_store_dwordx2 v[16:17], off, {rWS}, {sT[0]} offset:1024\ns_mov_b64 exec, -1")
A.label("L_BPUB_R")
stamp(7)
A(f"s_cmp_eq_u32 {sLayer}, 0\ns_cbranch_scc1 L_WOREST")
A.label("L_BG")
AB = [16, 20, 24, 28]
for ks in range(4): A(f"buffer_load_dwordx4 {vr(AB[ks],4)}, {vBg}, {rWS}, {sBg} offen offset:{ks * 64} sc1")
A(f"buffer_load_dwordx2 v[42:43], {vBs}, {rWS}, {sBs} offen sc1")
A.label("L_BGW")
A("s_waitcnt vmcnt(0)")
A("v_max3_u32 v44, v16, v17, v18\nv_max3_u32 v45, v19, v20, v21\nv_max3_u32 v46, v22, v23, v24\nv_max3_u32 v47, v25, v26, v27")
A("v_max3_u32 v44, v44, v28, v29\nv_max3_u32 v45, v45, v30, v31\nv_max3_u32 v46, v46, v42, v43\nv_max3_u32 v44, v44, v45, v46\nv_max_u32 v44, v44, v47\nv_cmp_eq_u32 vcc, -1, v44")
retry("L_BG", "L_BOK")
A.label("L_BOK")
stamp(8)
dump("bg", 16, 16)
DA = [44, 48, 52, 56]
ops = []
for ks in range(4):
    for i in range(4):
        ops.append(f"{MF} {vr(DA[i],4)}, {vr(AB[ks],4)}, {vr(WOF + (ks * 4 + i) * 4, 4)}, {'0' if ks == 0 else vr(DA[i],4)}")
st = ["v_max_f32_dpp v60, v42, v42 row_ror:1 row_mask:0xf bank_mask:0xf",
      "v_max_f32_dpp v60, v60, v60 row_ror:2 row_mask:0xf bank_mask:0xf",
      "v_max_f32_dpp v60, v60, v60 row_ror:4 row_mask:0xf bank_mask:0xf",
      "v_sub_f32 v42, v42, v60", "v_exp_f32 v42, v42", "v_mul_f32 v43, v42, v43",
      "v_add_f32_dpp v43, v43, v43 row_ror:1 row_mask:0xf bank_mask:0xf",
      "v_add_f32_dpp v43, v43, v43 row_ror:2 row_mask:0xf bank_mask:0xf",
      "v_add_f32_dpp v43, v43, v43 row_ror:4 row_mask:0xf bank_mask:0xf",
      "v_rcp_f32 v43, v43", "v_mul_f32 v42, v42, v43"]
for i, o in enumerate(ops):
    A(o)
    if i < len(st): A(st[i])
A(f"s_lshl_b32 {sT[0]}, {sW}, 8\ns_add_u32 {sT[0]}, {sT[0]}, {L_RED}\nv_add_u32 v43, {sT[0]}, {vL4}")
for i in range(4):
    A(f"v_mul_f32_dpp {v(16+i)}, v42, {v(DA[i])} row_newbcast:0 row_mask:0xf bank_mask:0xf")
for r in range(1, 4):
    for i in range(4):
        A(f"v_fmac_f32_dpp {v(16+i)}, v42, {v(DA[i]+r)} row_newbcast:{r} row_mask:0xf bank_mask:0xf")
A("v_permlane16_swap_b32 v16, v17\nv_permlane16_swap_b32 v18, v19\nv_add_f32 v16, v16, v17\nv_add_f32 v18, v18, v19\nv_permlane32_swap_b32 v16, v18")
A(f"ds_write_b32 v43, v16")
A(f"v_mov_b32 v20, {L_RED}\nv_lshl_add_u32 v20, {vLane}, 3, v20")
A(f"s_cmp_eq_u32 {sLayer}, 0\ns_cbranch_scc1 L_SY2")
A("s_waitcnt lgkmcnt(0)\ns_barrier")
A.label("L_SY2R")
A(f"s_cmp_lg_u32 {sW}, 0\ns_cbranch_scc1 L_CPUB_R")
for w in range(4): A(f"ds_read_b64 {vr(22 + 2 * w, 2)}, v20 offset:{w * 256}")
A("s_waitcnt lgkmcnt(0)")
A("v_add_f32 v22, v22, v24\nv_add_f32 v23, v23, v25\nv_add_f32 v26, v26, v28\nv_add_f32 v27, v27, v29\nv_add_f32 v22, v22, v26\nv_add_f32 v23, v23, v27\nv_cvt_pk_bf16_f32 v22, v22, v23")
A(f"s_mov_b32 exec_hi, 0\nbuffer_store_dword v22, {vL4}, {rWS}, {sCp} offen sc1\ns_mov_b32 exec_hi, -1")
A.label("L_CPUB_R")
stamp(9)
A(f"s_cmp_eq_u32 {sLayer}, 0\ns_cbranch_scc1 L_WQREST")
A(f"s_lshl_b32 {sT[0]}, {sB}, 1\ns_cmp_lg_u32 {sT[0]}, {sG}\ns_cbranch_scc1 L_FIN\ns_cmp_lg_u32 {sS}, 0\ns_cbranch_scc1 L_FIN")
A(f"ds_read_b64 v[{vXa[1:]}:{vXb[1:]}], {vXw} offset:{L_X2 - L_X1}")
A.label("L_CG")
for gi in range(8): A(f"buffer_load_dword {v(16 + gi)}, {vL4}, {rWS}, {sCg if gi < 4 else sCg2} offen offset:{(gi & 3) * 1024} sc1")
for e in range(8): A(f"v_mov_b32 {v(42 + e)}, 0")
A("s_waitcnt vmcnt(0) lgkmcnt(0)")
A("v_max3_u32 v24, v16, v17, v18\nv_max3_u32 v25, v19, v20, v21\nv_max3_u32 v24, v24, v22, v23\nv_max_u32 v24, v24, v25\nv_cmp_eq_u32 vcc, -1, v24")
retry("L_CG", "L_COK")
A.label("L_COK")
stamp(10)
for gi in range(8): A(f"v_lshlrev_b32 {v(24 + gi)}, 16, {v(16 + gi)}\nv_and_b32 {v(16 + gi)}, 0xffff0000, {v(16 + gi)}")
A(f"""v_add_f32 v24, v24, v25
v_add_f32 v16, v16, v17
v_add_f32 v26, v26, v27
v_add_f32 v18, v18, v19
v_add_f32 v28, v28, v29
v_add_f32 v20, v20, v21
v_add_f32 v30, v30, v31
v_add_f32 v22, v22, v23
v_add_f32 v24, v24, v26
v_add_f32 v16, v16, v18
v_add_f32 v28, v28, v30
v_add_f32 v20, v20, v22
v_add_f32 v24, v24, v28
v_add_f32 v16, v16, v20
v_add_f32 v24, v24, {vXa}
v_add_f32 v25, v16, {vXb}
ds_write_b64 {vXw}, v[24:25]
v_add_f32 v26, v24, v25
v_mul_f32 v27, v24, v24
v_fmac_f32 v27, v25, v25
s_lshl_b32 {sT[0]}, {sW}, 3
s_add_u32 {sT[0]}, {sT[0]}, {L_XS}
v_mov_b32 v28, {sT[0]}
v_mov_b32 v29, {L_XS}""")
sum63("v26", "v27")
A("s_mov_b32 exec_lo, 0\ns_mov_b32 exec_hi, 0x80000000\nds_write_b64 v28, v[26:27]\ns_mov_b64 exec, -1")
A("s_waitcnt lgkmcnt(0)\ns_barrier")
stamp(11)
X1 = 16
A(f"ds_read_b128 v[24:27], v29\nds_read_b128 v[28:31], v29 offset:16\nds_read_b128 {vr(X1,4)}, {vXr}\nds_read_b128 {vr(X1+4,4)}, {vXr} offset:1024")
A("s_waitcnt lgkmcnt(2)")
A(f"""v_add_f32 v24, v24, v26
v_add_f32 v25, v25, v27
v_add_f32 v28, v28, v30
v_add_f32 v29, v29, v31
v_add_f32 v24, v24, v28
v_add_f32 v25, v25, v29
v_mul_f32 v24, {f2u(1/512)}, v24
v_mul_f32 v25, {f2u(1/512)}, v25
v_fma_f32 v25, -v24, v24, v25
v_max_f32 v25, 0, v25
v_mov_b32 v26, {f2u(EPS*EPS)}
v_fmac_f32 v26, {f2u(1+EPS)}, v25
v_rsq_f32 v26, v26
v_mul_f32 v24, v24, v26
s_waitcnt lgkmcnt(0)""")
for e in range(8): A(f"v_fma_f32 {v(32 + e)}, {v(X1 + e)}, v26, -v24")
HP = 28
for j in range(4): A(f"v_cvt_pk_bf16_f32 {v(HP + j)}, {v(32 + 2*j)}, {v(33 + 2*j)}")
for e in range(8):
    A(f"v_lshlrev_b32_sdwa {v(32 + e)}, 1, {v(HP + (e >> 1))} dst_sel:DWORD dst_unused:UNUSED_PAD src0_sel:DWORD src1_sel:WORD_{e & 1}")
    A(f"ds_read_u16_d16_hi {v(42 + e)}, {v(32 + e)} offset:{TOFF}")
A(f"s_mov_b32 {sT[0]}, 0x7fff7fff\ns_mov_b32 {sT[1]}, {(EMIN << 7) * 0x10001}\ns_mov_b32 {sT[2]}, {NENT}")
for j in range(4): A(f"v_and_b32 {v(24 + j)}, {sT[0]}, {v(HP + j)}\nv_pk_sub_u16 {v(24 + j)}, {v(24 + j)}, {sT[1]}")
A(f"v_pk_max_u16 v24, v24, v25\nv_pk_max_u16 v26, v26, v27\nv_pk_max_u16 v24, v24, v26")
A(f"v_max_u16_sdwa v24, v24, v24 dst_sel:DWORD dst_unused:UNUSED_PAD src0_sel:WORD_0 src1_sel:WORD_1\nv_cmp_le_u32 vcc, {sT[2]}, v24")
A("s_waitcnt lgkmcnt(0)")
if not O["nofb"]: A("s_cbranch_vccnz L_FB")
A.label("L_FBR")
dump("x1", X1, 16); dump("y", 42, 8)
for e in range(8): A(f"v_add_f32 {v(X1 + e)}, {v(X1 + e)}, {v(42 + e)}")
for j in range(4): A(f"v_cvt_pk_bf16_f32 {v(HP + j)}, {v(X1 + 2*j)}, {v(X1 + 2*j + 1)}")
A(f"s_cmp_eq_u32 {sLayer}, 0\ns_cbranch_scc0 L_OUT")
stamp(12)
QA = [44, 48, 52, 56]; HV = [32, 36]
side = []
for j in range(4):
    side += [f"v_lshlrev_b32 v40, 16, {v(HP + j)}", f"v_and_b32 v41, 0xffff0000, {v(HP + j)}"]
    if j == 0: side += ["v_add_f32 v24, v40, v41", "v_mul_f32 v25, v40, v40", "v_fmac_f32 v25, v41, v41"]
    else: side += ["v_add_f32 v24, v24, v40", "v_fmac_f32 v25, v40, v40", "v_add_f32 v24, v24, v41", "v_fmac_f32 v25, v41, v41"]
si = 0
for j in range(4):
    hb = HV[j & 1]
    for k in range(4): A(f"v_cndmask_b32 {v(hb + k)}, 0, {v(HP + k)}, {M[j]}")
    for a in range(4):
        A(f"{MF} {vr(QA[a],4)}, {vr(hb,4)}, {vr(WQF + (4 * j + a) * 4, 4)}, {'0' if j == 0 else vr(QA[a],4)}")
        for _ in range(2):
            if si < len(side): A(side[si]); si += 1
while si < len(side): A(side[si]); si += 1
A(f"ds_write_b128 {vXr}, {vr(X1,4)} offset:{L_X2 - L_X1}\nds_write_b128 {vXr}, {vr(X1+4,4)} offset:{L_X2 - L_X1 + 1024}")
allsum2("v24", "v25", "v26", "v27")
A(f"""v_mul_f32 v24, {f2u(1/512)}, v24
v_mul_f32 v25, {f2u(1/512)}, v25
v_fma_f32 v25, -v24, v24, v25
v_max_f32 v25, 0, v25
v_add_f32 v25, {f2u(EPS)}, v25
v_rsq_f32 v25, v25
v_add_f32 v26, {v(QA[0])}, {v(QA[1]+1)}
v_add_f32 v27, {v(QA[2]+2)}, {v(QA[3]+3)}
v_add_f32 v26, v26, v27
v_mov_b32 v27, v26
v_permlane16_swap_b32 v26, v27
v_add_f32 v26, v26, v27
v_mov_b32 v27, v26
v_permlane32_swap_b32 v26, v27
v_add_f32 v26, v26, v27
v_fma_f32 v26, -v24, {vCS}, v26
v_mul_f32 v26, v26, v25
v_lshlrev_b32 v28, 1, {vLane}
v_mov_b32_dpp v27, v26 quad_perm:[1,0,3,2] row_mask:0xf bank_mask:0xf
v_cvt_pk_bf16_f32 v26, v26, v27
s_mov_b64 exec, 0x5555
s_cmp_eq_u32 {sPure}, 2
s_cbranch_scc0 L_APUB_SC1
buffer_store_dword v26, v28, {rWS}, {sA2p} offen""")
A.label("L_APUB_R")
A("s_mov_b64 exec, -1")
stamp(13)
A(f"s_mov_b32 {sLayer}, 1")
for s_ in (sBg, sBp, sBs): A(f"s_add_u32 {s_}, {s_}, {W_BL}")
for s_ in (sCg, sCg2, sCp): A(f"s_add_u32 {s_}, {s_}, {W_CL}")
QB = [16, 24, 42, 50]
A.label("L_AG")
for ks in range(4): A(f"buffer_load_dwordx4 {vr(QB[ks],4)}, {vA2}, {rWS}, {sA2g} offen offset:{ks * 64} sc1")
A("s_waitcnt vmcnt(0)")
A("v_max3_u32 v58, v16, v17, v18\nv_max3_u32 v59, v19, v24, v25\nv_max3_u32 v60, v26, v27, v42\nv_max3_u32 v61, v43, v44, v45")
A("v_max3_u32 v58, v58, v50, v51\nv_max3_u32 v59, v59, v52, v53\nv_max3_u32 v58, v58, v59, v60\nv_max_u32 v58, v58, v61\nv_cmp_eq_u32 vcc, -1, v58")
retry("L_AG", "L_AOK")
A.label("L_AOK")
stamp(14)
dump("q2", QB[0], 4)
for ks in range(4):
    A(f"{MF} {vr(S0,4)}, {vr(KF + ks * 4, 4)}, {vr(QB[ks], 4)}, {'0' if ks == 0 else vr(S0,4)}")
    A(f"{MF} {vr(S1,4)}, {vr(KF + (4 + ks) * 4, 4)}, {vr(QB[ks], 4)}, {'0' if ks == 0 else vr(S1,4)}")
A("s_nop 7")
if O["stamps"]:
    A(f"v_mov_b32 v58, {vStamp}\ns_nop 1\nv_permlane32_swap_b32 {vStamp}, v58\ns_nop 1\nv_mov_b32 v58, {vStamp}\ns_nop 1\nv_permlane16_swap_b32 {vStamp}, v58")
A("s_branch L_ATT")

A.label("L_OUT")
A(f"s_cmp_lg_u32 {sW}, 0\ns_cbranch_scc1 L_FIN")
A(f"v_subrev_u32 v24, {L_X1}, {vXr}\nv_and_b32 v25, 0xf0, v24\nv_lshrrev_b32 v24, 8, v24\nv_lshlrev_b32 v24, 4, v24\nv_lshl_add_u32 v24, v25, 2, v24\ns_lshl_b32 {sT[0]}, {sB}, 10")
A(f"buffer_store_dwordx4 {vr(HP,4)}, v24, {rOUT}, {sT[0]} offen")
A.label("L_FIN")
if O["stamps"]:
    stamp(15)
    A(f"s_lshl_b32 {sT[0]}, s2, 3\ns_add_u32 {sT[0]}, {sT[0]}, {sW}\ns_lshl_b32 {sT[0]}, {sT[0]}, 8\ns_add_u32 {sT[0]}, {sT[0]}, {W_STAMP}")
    A(f"buffer_store_dword {vStamp}, {vL4}, {rWS}, {sT[0]} offen")
A.label("L_END")
A("s_endpgm")

A.label("L_SY1")
A(f"v_mov_b32 v19, 1\ns_mov_b64 exec, 1\nds_add_u32 v40, v19 offset:{C_S1}\ns_mov_b64 exec, -1")
spin_lds("v40", "v19", 1, sPure, off=C_READY)
if O["forcesc1"]: A(f"s_mov_b32 {sPure}, 1")
spin_lds("v40", "v19", 4, sT[0], off=C_S1)
A("s_branch L_SY1R")
A.label("L_SY2")
A(f"v_mov_b32 v19, 1\ns_mov_b64 exec, 1\nds_add_u32 v40, v19 offset:{C_S2}\ns_mov_b64 exec, -1")
spin_lds("v40", "v19", 4, sT[0], off=C_S2)
A("s_branch L_SY2R")
A.label("L_BPUB_SC1")
A(f"buffer_store_dword v42, {vL4}, {rWS}, {sBp} offen sc1\ns_mov_b64 exec, 1\nbuffer_store_dwordx2 v[16:17], off, {rWS}, {sT[0]} offset:1024 sc1\ns_mov_b64 exec, -1\ns_branch L_BPUB_R")
A.label("L_APUB_SC1")
A(f"buffer_store_dword v26, v28, {rWS}, {sA2p} offen sc1\ns_branch L_APUB_R")
A.label("L_WOREST")
for qi in range(1, 4): wo_quarter(qi)
for ks in range(4): A(f"buffer_load_dwordx4 {vr(AB[ks],4)}, {vBg}, {rWS}, {sBg} offen offset:{ks * 64} sc1")
A(f"buffer_load_dwordx2 v[42:43], {vBs}, {rWS}, {sBs} offen sc1")
A(f"s_lshl_b32 {sT[0]}, {sW}, 13\nv_add_u32 v44, {sT[0]}, {vWr}\nv_add_u32 v48, {L_WOB}, v44")
for i in range(1, 4): A(f"v_xor_b32 {v(44 + i)}, {32 * i}, v44\nv_xor_b32 {v(48 + i)}, {32 * i}, v48")
A("s_waitcnt vmcnt(5)")
for ks in range(4):
    for i in range(4):
        for hf in range(2):
            A(f"ds_read_b64_tr_b16 {vr(WOF + (ks * 4 + i) * 4 + 2 * hf, 2)}, {v((44 if ks < 2 else 48) + i)} offset:{(ks & 1) * 4096 + hf * 512}")
A("s_waitcnt lgkmcnt(0)")
dump("wof", WOF, 16)
A("s_branch L_BGW")
A.label("L_WQREST")
A(f"""v_lshrrev_b32 v24, 3, {vLane}
v_and_b32 v23, 7, {vLane}
v_bfe_u32 v22, {vLane}, 4, 1
v_lshlrev_b32 v22, 1, v22
v_xor_b32 v23, v23, v22
v_lshlrev_b32 v23, 4, v23
v_lshl_add_u32 v16, v24, 13, v23
s_lshl_b32 {sT[0]}, {sG}, 10
s_lshl_b32 {sT[1]}, {sS}, 7
s_add_u32 {sT[0]}, {sT[0]}, {sT[1]}
v_add_u32 v16, {sT[0]}, v16
v_xor_b32 v17, 64, v16
s_mul_i32 {sT[3]}, {sW}, 3
s_lshl_b32 {sT[4]}, {sB}, 2
s_add_u32 {sT[3]}, {sT[3]}, {sT[4]}""")
for j in range(3):
    A(f"s_add_u32 {sT[1]}, {sT[3]}, {4 + j}\ns_and_b32 {sT[1]}, {sT[1]}, 15\ns_lshl_b32 {sT[1]}, {sT[1]}, 18")
    if j < 2: A(f"s_lshl_b32 {sT[2]}, {sW}, 13\ns_add_u32 {sT[2]}, {sT[2]}, {L_V + j * 4096}")
    else: A(f"s_lshl_b32 {sT[2]}, {sW}, 12\ns_add_u32 {sT[2]}, {sT[2]}, {L_WQX}")
    wdma("v16", "v17", rWQ, sT[1], 65536, sT[2], "")
A(f"s_lshl_b32 {sT[0]}, {sW}, 5\nv_xor_b32 v18, {sT[0]}, {vWr}\nv_add_u32 v20, {L_WQO}, v18\nv_mov_b32 v19, 1")
A(f"s_waitcnt vmcnt(0)\ns_mov_b64 exec, 1\nds_add_u32 v40, v19 offset:{C_S3}\ns_mov_b64 exec, -1")
spin_lds("v40", "v19", 5, sT[0], off=C_S3)
for c in range(16):
    if c < 4: base, off = "v20", c * 4096
    else:
        u = c - 4; w_, j = u // 3, u % 3
        if j < 2: base, off = "v18", L_V + w_ * 8192 + j * 4096
        else: base, off = "v20", L_WQX - L_WQO + w_ * 4096
    for hf in range(2):
        A(f"ds_read_b64_tr_b16 {vr(WQF + c * 4 + 2 * hf, 2)}, {base} offset:{off + hf * 512}")
A(f"v_mov_b32 v21, 0x3f803f80")
A("s_waitcnt lgkmcnt(0)")
for j in range(4):
    hb = HV[j & 1]
    for k in range(4): A(f"v_cndmask_b32 {v(hb + k)}, 0, v21, {M[j]}")
    for a in range(4):
        A(f"{MF} {vr(QA[a],4)}, {vr(hb,4)}, {vr(WQF + (4 * j + a) * 4, 4)}, {'0' if j == 0 else vr(QA[a],4)}")
A(f"""v_add_f32 v26, {v(QA[0])}, {v(QA[1]+1)}
v_add_f32 v27, {v(QA[2]+2)}, {v(QA[3]+3)}
v_add_f32 v26, v26, v27
v_mov_b32 v27, v26
v_permlane16_swap_b32 v26, v27
v_add_f32 v26, v26, v27
v_mov_b32 v27, v26
v_permlane32_swap_b32 v26, v27
v_add_f32 {vCS}, v26, v27""")
dump("wqf", WQF, 16)
A("s_branch L_CG")

A.label("L_FB")
A(f"s_load_dword {sB2}, {sB2p}, 0\ns_mov_b32 {sT[5]}, 0")
for e in range(8):
    if e & 1: A(f"v_and_b32 {v(32 + e)}, 0xffff0000, {v(HP + (e >> 1))}")
    else: A(f"v_lshlrev_b32 {v(32 + e)}, 16, {v(HP + (e >> 1))}")
A(f"v_lshlrev_b32 v24, 3, {vLane}\ns_waitcnt lgkmcnt(0)\ns_lshl_b32 {sB2}, {sB2}, 16")
A.label("L_FB_E")
A(f"v_bfe_u32 v25, v32, 16, 15\nv_subrev_u32 v25, {EMIN << 7}, v25\nv_cmp_le_u32 vcc, {sT[2]}, v25\ns_mov_b64 s[78:79], vcc")
A.label("L_FB_L")
A(f"s_cmp_eq_u64 s[78:79], 0\ns_cbranch_scc1 L_FB_N")
A(f"s_ff1_i32_b64 {sT[6]}, s[78:79]\ns_bitset0_b64 s[78:79], {sT[6]}\ns_nop 3\nv_readlane_b32 {sT[7]}, v32, {sT[6]}\nv_mov_b32 v26, 0\ns_mov_b32 {sT[8]}, 0")
A.label("L_FB_C")
A(f"buffer_load_dwordx2 v[50:51], v24, {rW1}, {sT[8]} offen\nbuffer_load_dwordx2 v[52:53], v24, {rB1}, {sT[8]} offen\nbuffer_load_dwordx2 v[54:55], v24, {rW2}, {sT[8]} offen\ns_waitcnt vmcnt(0)")
for k in range(4):
    ex = (lambda d, s_: f"v_and_b32 {d}, 0xffff0000, {s_}") if k & 1 else (lambda d, s_: f"v_lshlrev_b32 {d}, 16, {s_}")
    A(ex("v56", v(50 + (k >> 1)))); A(ex("v57", v(52 + (k >> 1)))); A(ex("v58", v(54 + (k >> 1))))
    A(f"""v_fma_f32 v56, v56, {sT[7]}, v57
v_mul_f32 v57, v56, v56
v_mov_b32 v59, {f2u(K0)}
v_fmac_f32 v59, {f2u(K1)}, v57
v_mul_f32 v57, v56, v59
v_exp_f32 v57, v57
v_mul_f32 v56, v56, v58
v_add_f32 v57, 1.0, v57
v_rcp_f32 v57, v57
s_nop 0
v_fmac_f32 v26, v56, v57""")
A(f"s_add_u32 {sT[8]}, {sT[8]}, 512\ns_cmp_lt_u32 {sT[8]}, 3584\ns_cbranch_scc1 L_FB_C")
sum63("v26")
A(f"v_add_f32 v26, {sB2}, v26\nv_cvt_pk_bf16_f32 v26, v26, v26\nv_and_b32 v26, 0xffff0000, v26\nv_readlane_b32 {sT[7]}, v26, 63\ns_mov_b32 m0, {sT[6]}\ns_nop 3\nv_writelane_b32 v42, {sT[7]}, m0\ns_branch L_FB_L")
A.label("L_FB_N")
A("v_mov_b32 v25, v32\nv_mov_b32 v26, v42")
for e in range(7): A(f"v_mov_b32 {v(32 + e)}, {v(33 + e)}\nv_mov_b32 {v(42 + e)}, {v(43 + e)}")
A(f"v_mov_b32 v39, v25\nv_mov_b32 v49, v26\ns_add_u32 {sT[5]}, {sT[5]}, 1\ns_cmp_lt_u32 {sT[5]}, 8\ns_cbranch_scc1 L_FB_E\ns_branch L_FBR")

A.label("L_Q1PRE")
A(f"""v_and_b32 v20, 3, v18
v_lshrrev_b32 v21, 2, v18
v_lshlrev_b32 v25, 4, v19
v_lshl_add_u32 v25, v21, 8, v25
v_lshl_add_u32 v25, v20, 10, v25
v_lshl_add_u32 v26, v24, 13, v23
s_lshl_b32 {sT[0]}, {sG}, 10
s_lshl_b32 {sT[1]}, {sS}, 7
s_add_u32 {sT[0]}, {sT[0]}, {sT[1]}
v_add_u32 v26, {sT[0]}, v26
v_xor_b32 v27, 64, v26
s_lshl_b32 {sT[1]}, {sB}, 20
s_waitcnt lgkmcnt(0)""")
for c in range(4):
    if c: A(f"s_add_u32 {sT[1]}, {sT[1]}, {65536 + 3 * 1024}")
    wdma("v26", "v27", rWQ, sT[1], 65536, str(L_WQO + c * 4096), WF)
    if c == 0:
        for ks in range(4): A(f"buffer_load_dwordx4 {vr(80 + 4 * ks, 4)}, v25, {rX}, 0 offen offset:{ks * 64}")
A.label("L_HELP")
A("s_waitcnt lgkmcnt(0)")
if O["stamps"]: A(f"v_writelane_b32 {vStamp}, s92, 0")
A("s_barrier")
A(f"v_mov_b32 v40, {L_CTL}")
A.c("---- helpers: MLP weights -> v[100:113] w1, v[114:127] b1, v[128:141] w2 (raw bf16 pairs)")
A(f"v_lshlrev_b32 v28, 4, {vLane}\nv_lshlrev_b32 v29, 3, {vLane}")
for (srd, base) in ((rW1, 100), (rB1, 114), (rW2, 128)):
    for j in range(3): A(f"buffer_load_dwordx4 {vr(base + 4 * j, 4)}, v28, {srd}, 0 offen offset:{j * 1024}")
    A(f"buffer_load_dwordx2 {vr(base + 12, 2)}, v29, {srd}, 0 offen offset:3072")
A(f"s_load_dword {sB2}, {sB2p}, 0")
A(f"s_cmp_eq_u32 {sW}, 7\ns_cbranch_scc1 L_Q1")
A(f"s_cmp_lg_u32 {sW}, 4\ns_cbranch_scc1 L_TAB")
A.c("---- wave 4: epoch -> tag, clear this WG's hand-off slots, then raise the flag byte")
A(f"s_load_dword {sTag}, s[28:29], 0")
A(f"""v_mov_b32 v16, -1
v_mov_b32 v17, -1
v_mov_b32 v18, -1
v_mov_b32 v19, -1
s_mul_i32 {sT[0]}, {sCL}, 9216
s_mul_i32 {sT[1]}, {sS}, 1152
s_add_u32 {sT[0]}, {sT[0]}, {sT[1]}
s_add_u32 {sT[0]}, {sT[0]}, {W_B}
s_add_u32 {sT[1]}, {sT[0]}, {W_BL}
buffer_store_dwordx4 v[16:19], v28, {rWS}, {sT[0]} offen sc1
buffer_store_dwordx4 v[16:19], v28, {rWS}, {sT[1]} offen sc1
s_mov_b64 exec, 0xff
buffer_store_dwordx4 v[16:19], v28, {rWS}, {sT[0]} offen offset:1024 sc1
buffer_store_dwordx4 v[16:19], v28, {rWS}, {sT[1]} offen offset:1024 sc1
s_lshl_b32 {sT[0]}, {sCL}, 10
s_lshl_b32 {sT[1]}, {sS}, 7
s_add_u32 {sT[0]}, {sT[0]}, {sT[1]}
s_add_u32 {sT[1]}, {sT[0]}, {W_A2}
buffer_store_dwordx4 v[16:19], v28, {rWS}, {sT[1]} offen sc1
s_add_u32 {sT[1]}, {sT[0]}, {W_C}
buffer_store_dwordx4 v[16:19], v28, {rWS}, {sT[1]} offen sc1
s_add_u32 {sT[1]}, {sT[1]}, {W_CL}
buffer_store_dwordx4 v[16:19], v28, {rWS}, {sT[1]} offen sc1
s_mov_b64 exec, 0x1f
s_mul_i32 {sT[0]}, s2, 80
s_add_u32 {sT[0]}, {sT[0]}, {W_TAB}
buffer_store_dwordx4 v[16:19], v28, {rWS}, {sT[0]} offen sc1
s_mov_b64 exec, -1
s_getreg_b32 {sT[0]}, hwreg(HW_REG_XCC_ID)
s_and_b32 {sT[0]}, {sT[0]}, 15
s_or_b32 {sT[0]}, {sT[0]}, 0x80
v_mov_b32 v20, {sT[0]}
s_lshl_b32 {sT[1]}, {sCL}, 3
s_add_u32 {sT[1]}, {sT[1]}, {sS}
s_waitcnt lgkmcnt(0)
s_add_u32 {sTag}, {sTag}, 0x9E3779B8
s_or_b32 {sTag}, {sTag}, 1
v_mov_b32 v21, {sTag}
ds_write_b32 v40, v21 offset:{C_TAG}
s_waitcnt vmcnt(0)
ds_write_b32 v40, v21 offset:{C_CLR}
s_mov_b64 exec, 1
buffer_store_byte v20, off, {rDBG}, {sT[1]} sc1
s_mov_b64 exec, -1
s_branch L_TAB""")
A.c("---- wave 7: layer-1 q-projection partials (k-quarter b, all 4 batches)")
A.label("L_Q1")
A("s_waitcnt vmcnt(24)")
for k in range(16): A(f"v_lshlrev_b32 {v(48 + 2*k)}, 16, {v(80 + k)}\nv_and_b32 {v(49 + 2*k)}, 0xffff0000, {v(80 + k)}")
A("v_add_f32 v16, v48, v49\nv_mul_f32 v17, v48, v48\nv_fmac_f32 v17, v49, v49")
for k in range(2, 32): A(f"v_add_f32 v16, v16, {v(48 + k)}\nv_fmac_f32 v17, {v(48 + k)}, {v(48 + k)}")
allsum2("v16", "v17", "v20", "v21", rors=(4, 8))
A(f"""v_mul_f32 v16, {f2u(1/512)}, v16
v_mul_f32 v17, {f2u(1/512)}, v17
v_fma_f32 v17, -v16, v16, v17
v_max_f32 v17, 0, v17
v_add_f32 v17, {f2u(EPS)}, v17
v_rsq_f32 v17, v17
v_add_u32 v20, {L_WQO}, {vWr}
v_mul_f32 v16, v16, v17""")
for k in range(32): A(f"v_fma_f32 {v(48 + k)}, {v(48 + k)}, v17, -v16")
for k in range(16): A(f"v_cvt_pk_bf16_f32 {v(80 + k)}, {v(48 + 2*k)}, {v(49 + 2*k)}")
for i in range(1, 4): A(f"v_xor_b32 {v(20 + i)}, {32 * i}, v20")
A(f"v_mov_b32 v16, 1\ns_waitcnt vmcnt(12)\ns_mov_b64 exec, 1\nds_add_u32 v40, v16 offset:{C_S3}\ns_mov_b64 exec, -1")
for ks in range(4):
    for i in range(4):
        for hf in range(2):
            A(f"ds_read_b64_tr_b16 {vr(160 + (ks * 4 + i) * 4 + 2 * hf, 2)}, {v(20 + i)} offset:{ks * 4096 + hf * 512}")
spin_lds("v40", "v16", 1, sTag, off=C_TAG)
for ks in range(4):
    for i in range(4):
        A(f"{MF} {vr(48 + 4 * i, 4)}, {vr(160 + (ks * 4 + i) * 4, 4)}, {vr(80 + 4 * ks, 4)}, {'0' if ks == 0 else vr(48 + 4 * i, 4)}")
A(f"""v_and_b32 v16, 3, v18
v_lshlrev_b32 v16, 16, v16
v_lshl_add_u32 v16, v19, 4, v16
s_lshl_b32 {sT[0]}, {sG}, 13
s_lshl_b32 {sT[1]}, {sS}, 10
s_add_u32 {sT[0]}, {sT[0]}, {sT[1]}
s_lshl_b32 {sT[1]}, {sB}, 8
s_add_u32 {sT[0]}, {sT[0]}, {sT[1]}
s_add_u32 {sT[0]}, {sT[0]}, {W_A1}
s_lshl_b32 {sT[1]}, {sB}, 2
s_lshl_b32 {sT[2]}, s60, {sT[1]}""")
for i in range(4):
    A(f"v_cvt_pk_bf16_f32 {v(64 + 4*i)}, {v(48 + 4*i)}, {v(49 + 4*i)}\nv_mov_b32 {v(65 + 4*i)}, {sTag}\nv_cvt_pk_bf16_f32 {v(66 + 4*i)}, {v(50 + 4*i)}, {v(51 + 4*i)}\nv_mov_b32 {v(67 + 4*i)}, {sTag}")
A(f"s_mov_b32 exec_lo, {sT[2]}\ns_mov_b32 exec_hi, {sT[2]}")
for i in range(4): A(f"buffer_store_dwordx4 {vr(64 + 4*i, 4)}, v16, {rWS}, {sT[0]} offen offset:{64 * i} sc1")
A("s_mov_b64 exec, -1")
stamp(1)
A.c("---- all helpers: table entries")
A.label("L_TAB")
cnt = [int(x) for x in O["cnt"].split(",")]; assert sum(cnt) == NEXP
starts = [sum(cnt[:i]) for i in range(4)]
pk = lambda l: sum(x << (8 * i) for i, x in enumerate(l))
A(f"""s_sub_u32 {sT[0]}, {sW}, 4
s_lshl_b32 {sT[0]}, {sT[0]}, 3
s_lshr_b32 {sT[1]}, {pk(starts)}, {sT[0]}
s_and_b32 {sT[1]}, {sT[1]}, 0xff
s_lshr_b32 {sT[2]}, {pk(cnt)}, {sT[0]}
s_and_b32 {sT[2]}, {sT[2]}, 0xff
s_mul_i32 {sT[3]}, s2, {NEXP}
s_add_u32 {sT[3]}, {sT[3]}, {sT[1]}
s_mov_b32 {sT[4]}, 0
s_waitcnt vmcnt(0) lgkmcnt(0)
s_lshl_b32 {sB2}, {sB2}, 16""")
stamp(2)
W1, B1, C1, C0 = 144, 172, 200, 228
for k in range(14):
    for (raw, dst) in ((100, W1), (114, B1), (128, C1)):
        A(f"v_lshlrev_b32 {v(dst + 2*k)}, 16, {v(raw + k)}\nv_and_b32 {v(dst + 2*k + 1)}, 0xffff0000, {v(raw + k)}")
for k in range(14):
    A(f"v_pk_mul_f32 {vr(C0 + 2*k, 2)}, {vr(B1 + 2*k, 2)}, {vr(C1 + 2*k, 2)}\nv_pk_mul_f32 {vr(C1 + 2*k, 2)}, {vr(W1 + 2*k, 2)}, {vr(C1 + 2*k, 2)}")
A(f"v_mov_b32 v16, {f2u(K0)}\nv_mov_b32 v17, {f2u(K0)}\nv_mov_b32 v18, {f2u(K1)}\nv_mov_b32 v19, {f2u(K1)}\nv_mov_b32 v30, 0")
A.label("L_TABE")
A(f"""s_add_u32 {sT[5]}, {sT[3]}, {sT[4]}
s_cmp_ge_u32 {sT[5]}, {NENT}
s_cselect_b32 {sT[6]}, {0x8000 - NENT}, 0
s_add_u32 {sT[5]}, {sT[5]}, {sT[6]}
s_add_u32 {sT[5]}, {sT[5]}, {EMIN << 7}
s_lshl_b32 {sT[5]}, {sT[5]}, 16
v_mov_b32 v20, {sT[5]}
v_mov_b32 v21, {sT[5]}""")
for gq in range(7):
    ka, kb = 2 * gq, 2 * gq + 1
    U, T, UW = (32, 34), (36, 38), (42, 44)
    for x, k in enumerate((ka, kb)): A(f"v_pk_fma_f32 {vr(U[x],2)}, v[20:21], {vr(W1 + 2*k, 2)}, {vr(B1 + 2*k, 2)}")
    for x in range(2): A(f"v_pk_mul_f32 {vr(T[x],2)}, {vr(U[x],2)}, {vr(U[x],2)}")
    for x in range(2): A(f"v_pk_fma_f32 {vr(T[x],2)}, {vr(T[x],2)}, v[18:19], v[16:17]")
    for x in range(2): A(f"v_pk_mul_f32 {vr(T[x],2)}, {vr(U[x],2)}, {vr(T[x],2)}")
    for x in range(4): A(f"v_exp_f32 {v(36 + x)}, {v(36 + x)}")
    for x, k in enumerate((ka, kb)): A(f"v_pk_fma_f32 {vr(UW[x],2)}, v[20:21], {vr(C1 + 2*k, 2)}, {vr(C0 + 2*k, 2)}")
    for x in range(2): A(f"v_pk_add_f32 {vr(T[x],2)}, {vr(T[x],2)}, 1.0 op_sel_hi:[1,0]")
    for x in range(4): A(f"v_rcp_f32 {v(36 + x)}, {v(36 + x)}")
    for x in range(2):
        if gq == 0: A(f"v_pk_mul_f32 {vr(22 + 2*x, 2)}, {vr(UW[x],2)}, {vr(T[x],2)}")
        else: A(f"v_pk_fma_f32 {vr(22 + 2*x, 2)}, {vr(UW[x],2)}, {vr(T[x],2)}, {vr(22 + 2*x, 2)}")
A("v_pk_add_f32 v[22:23], v[22:23], v[24:25]\nv_add_f32 v22, v22, v23")
sum63("v22")
A(f"v_add_f32 v22, {sB2}, v22\ns_mov_b32 m0, {sT[4]}\nv_readlane_b32 {sT[5]}, v22, 63\ns_nop 3\nv_writelane_b32 v30, {sT[5]}, m0")
A(f"s_add_u32 {sT[4]}, {sT[4]}, 1\ns_cmp_lt_u32 {sT[4]}, {sT[2]}\ns_cbranch_scc1 L_TABE")
spin_lds("v40", "v17", 1, sT[0], off=C_CLR)
A(f"""s_lshl_b32 {sT[3]}, {sT[3]}, 2
s_add_u32 {sT[3]}, {sT[3]}, {W_TAB}
s_bfm_b64 exec, {sT[2]}, 0
v_min_u32 v30, -2, v30
buffer_store_dword v30, {vL4}, {rWS}, {sT[3]} offen sc1
s_mov_b64 exec, -1""")
stamp(3)
A(f"s_cmp_lg_u32 {sW}, 5\ns_cbranch_scc1 L_TABW")
A.c("---- wave 5: wait for all 256 flag bytes; purity of own cluster; READY word; WG0 advances the epoch")
A.label("L_FLG")
A(f"buffer_load_dword v16, {vL4}, {rDBG}, 0 offen sc1\ns_mov_b32 {sT[0]}, 0x80808080\ns_waitcnt vmcnt(0)\nv_and_b32 v17, {sT[0]}, v16\nv_cmp_ne_u32 vcc, {sT[0]}, v17")
retry("L_FLG", "L_FLGOK")
A.label("L_FLGOK")
A(f"""s_lshl_b32 {sT[0]}, {sCL}, 1
s_add_u32 {sT[1]}, {sT[0]}, 1
s_nop 3
v_readlane_b32 {sT[2]}, v16, {sT[0]}
v_readlane_b32 {sT[3]}, v16, {sT[1]}
s_getreg_b32 {sT[0]}, hwreg(HW_REG_XCC_ID)
s_and_b32 {sT[0]}, {sT[0]}, 15
s_or_b32 {sT[0]}, {sT[0]}, 0x80
s_mul_i32 {sT[0]}, {sT[0]}, 0x01010101
s_xor_b32 {sT[2]}, {sT[2]}, {sT[0]}
s_xor_b32 {sT[3]}, {sT[3]}, {sT[0]}
s_or_b32 {sT[2]}, {sT[2]}, {sT[3]}
s_cmp_eq_u32 {sT[2]}, 0
s_cselect_b32 {sT[2]}, 2, 1
v_mov_b32 v17, {sT[2]}
ds_write_b32 v40, v17 offset:{C_READY}
s_cmp_lg_u32 s2, 0
s_cbranch_scc1 L_TABW
ds_read_b32 v17, v40 offset:{C_TAG}
s_waitcnt lgkmcnt(0)
s_mov_b64 exec, 1
buffer_store_dword v17, off, {rWS}, 0 sc1
s_mov_b64 exec, -1""")
A.label("L_TABW")
spin_lds("v40", "v17", 1, sT[0], off=C_READY)
stamp(4)
A(f"s_sub_u32 {sT[0]}, {sW}, 4\ns_mul_i32 {sT[1]}, {sT[0]}, 5120\ns_add_u32 {sT[1]}, {sT[1]}, {W_TAB}\ns_add_u32 {sT[2]}, {sT[1]}, 4096")
A.label("L_TG")
for j in range(5): A(f"buffer_load_dwordx4 {vr(44 + 4*j, 4)}, v28, {rWS}, {sT[1] if j < 4 else sT[2]} offen offset:{(j & 3) * 1024} sc1")
A("s_waitcnt vmcnt(0)")
A("v_max3_u32 v16, v44, v45, v46")
for k in range(47, 63, 2): A(f"v_max3_u32 v16, v16, {v(k)}, {v(k+1)}")
A("v_max_u32 v16, v16, v63\nv_cmp_eq_u32 vcc, -1, v16")
retry("L_TG", "L_TGOK")
A.label("L_TGOK")
A(f"""s_mul_i32 {sT[1]}, {sT[0]}, 2560
s_mov_b32 {sT[2]}, {L_TPOS}
s_cmp_ge_u32 {sT[0]}, 2
s_cselect_b32 {sT[2]}, {L_TNEG - 5120}, {sT[2]}
s_add_u32 {sT[1]}, {sT[1]}, {sT[2]}
v_add_u32 v16, {sT[1]}, v29""")
for j in range(5):
    A(f"v_cvt_pk_bf16_f32 {v(44 + 4*j)}, {v(44 + 4*j)}, {v(45 + 4*j)}\nv_cvt_pk_bf16_f32 {v(45 + 4*j)}, {v(46 + 4*j)}, {v(47 + 4*j)}\nds_write_b64 v16, {vr(44 + 4*j, 2)} offset:{j * 512}")
A("s_waitcnt lgkmcnt(0)")
A("s_branch L_FIN")

A('.section .rodata,"a"\n.p2align 6')
A(f".amdhsa_kernel {NAME}")
for l in ("next_free_vgpr 256", "next_free_sgpr 102", "accum_offset 256", "group_segment_fixed_size 0", "kernarg_size 104",
          "user_sgpr_count 2", "user_sgpr_kernarg_segment_ptr 1", "system_sgpr_workgroup_id_x 1"):
    A(f".amdhsa_{l}")
A(".end_amdhsa_kernel")
sys.stdout.write(A.finish())
sys.stderr.write("dumps: %s\n" % dump_ids)
```
